```python
import torch

def _softmax(x, axis=-1):
    return torch.softmax(x, dim=axis)
def _gelu(x):
    return torch.nn.functional.gelu(x, approximate="tanh")
def _silu(x):
    return torch.nn.functional.silu(x)
def _sigmoid(x):
    return torch.sigmoid(x)
def _layernorm(x, axis=-1, eps=1e-5):
    m = x.mean(dim=axis, keepdim=True)
    v = x.var(dim=axis, keepdim=True, unbiased=False)
    return (x - m) / torch.sqrt(v + eps)
def _scatter_add(tgt, idx, src, axis=0):
    return tgt.clone().index_add_(axis, idx, src)
def _segment_sum(src, seg, n):
    out = torch.zeros((n,) + src.shape[1:], dtype=src.dtype)
    return out.index_add_(0, seg, src)
def _pad(x, pw):
    flat = tuple(v for pair in reversed(pw) for v in pair)
    return torch.nn.functional.pad(x, flat)

kernel_name = 'sequential_preLN__ssm_conv_h3__geglu_ffn__prompt'

def setup_inputs():

    _w = (lambda a: (lambda t: t.to(torch.bfloat16) if t.is_floating_point() else t)(torch.as_tensor(a)))
    def _A_setup():
        B, S, D = 1, 2048, 448
        ks = 4
        return {
            "q": _w((lambda *s: torch.randn(*s, dtype=torch.bfloat16) * 0.05)(B, S, D)),
            "k": _w((lambda *s: torch.randn(*s, dtype=torch.bfloat16) * 0.4)(B, S, D)),
            "v": _w((lambda *s: torch.randn(*s, dtype=torch.bfloat16) * 0.4)(B, S, D)),
            "shift_k": _w((lambda *s: torch.randn(*s, dtype=torch.bfloat16) * 0.4)(D, ks) * 0.5),
            "ssm_k": _w((lambda *s: torch.randn(*s, dtype=torch.bfloat16) * 0.4)(D, S) * (1.0 / S ** 0.5)),
            "ssm_D": _w((lambda *s: torch.randn(*s, dtype=torch.bfloat16) * 0.4)(D)),
        }
    _A_in = _A_setup()

    def _B_setup():
        B, S, D, F = 1, 2048, 448, 1792
        return {
            "x": _w((lambda *s: torch.randn(*s, dtype=torch.bfloat16) * 0.05)(B, S, D)),
            "w_gate": _w((lambda *s: torch.randn(*s, dtype=torch.bfloat16) * 0.05)(D, F)),
            "w_up": _w((lambda *s: torch.randn(*s, dtype=torch.bfloat16) * 0.05)(D, F)),
            "w_down": _w((lambda *s: torch.randn(*s, dtype=torch.bfloat16) * 0.05)(F, D)),
        }
    _B_in = _B_setup()

    return {
        "A_q": _A_in["q"],
        "A_k": _A_in["k"],
        "A_v": _A_in["v"],
        "A_shift_k": _A_in["shift_k"],
        "A_ssm_k": _A_in["ssm_k"],
        "A_ssm_D": _A_in["ssm_D"],
        "B_x": _B_in["x"],
        "B_w_gate": _B_in["w_gate"],
        "B_w_up": _B_in["w_up"],
        "B_w_down": _B_in["w_down"],
    }

def reference(A_q, A_k, A_v, A_shift_k, A_ssm_k, A_ssm_D, B_x, B_w_gate, B_w_up, B_w_down):
    def _A_ref(q, k, v, shift_k, ssm_k, ssm_D):
        B, S, D = q.shape
        ks = shift_k.shape[-1]
        k_pad = _pad(k, ((0, 0), (ks - 1, 0), (0, 0)))
        k_shift = torch.zeros_like(k)
        for t in range(ks):
            k_shift = k_shift + k_pad[:, t:t + S, :] * shift_k[:, ks - 1 - t][None, None, :]
        kv = k_shift * v
        L = 2 * S
        kv_pad = _pad(kv, ((0, 0), (0, S), (0, 0)))
        kf_pad = _pad(ssm_k, ((0, 0), (0, S)))
        kv_f = (lambda x, axes=(-2,-1): torch.fft.rfft2(x.float(), dim=axes))(kv_pad[:, None, :, :], axes=(1, 2))
        kf_f = (lambda x, axes=(-2,-1): torch.fft.rfft2(x.float(), dim=axes))(kf_pad[:, None, :], axes=(1, 2))
        kf_f = (lambda x, *d: x.permute(*d))(kf_f, 1, 2, 0)
        y_f = kv_f * kf_f[None, :, :, :]
        y = (lambda x, s, axes=(-2,-1): torch.fft.irfft2(x, s=s, dim=axes).to(torch.bfloat16))(y_f, (1, L), axes=(1, 2))[:, 0, :S, :]
        y = y + kv * ssm_D[None, None, :]
        return q * y

    def _B_ref(x, w_gate, w_up, w_down):
        return (_gelu(x @ w_gate) * (x @ w_up)) @ w_down

    x = A_q
    h = x + _A_ref(_layernorm(x, axis=-1), A_k, A_v, A_shift_k, A_ssm_k, A_ssm_D)
    h2 = h + _B_ref(_layernorm(h, axis=-1), B_w_gate, B_w_up, B_w_down)
    return h2
```

```python
class Asm:
    def __init__(self):
        self.lines = []
        self.nlabel = 0
    def __call__(self, s, *a):
        for ln in s.split("\n"):
            ln = ln.strip()
            if not ln: continue
            if ln.endswith(":") or ln.startswith("."):
                self.lines.append(ln)
            else:
                self.lines.append("    " + ln)
    def label(self, base="L"):
        self.nlabel += 1
        return f"{base}_{self.nlabel}"
    def c(self, s):
        self.lines.append("    ; " + s)
    def text(self):
        return "\n".join(self.lines) + "\n"

def v(i, n=1):
    return f"v{i}" if n == 1 else f"v[{i}:{i+n-1}]"
def s(i, n=1):
    return f"s{i}" if n == 1 else f"s[{i}:{i+n-1}]"
import struct
def f32(x):
    return "0x%08x" % struct.unpack("<I", struct.pack("<f", x))[0]
```

```python
import sys, math
from asmlib import *

NAME = "sequential_preLN__ssm_conv_h3__geglu_ffn__prompt"
S, D, F = 2048, 448, 1792
NWG = 224
KVT, XT, ST1, HT, GG = 0, 0x200000, 0x400000, 0x500000, 0x800000
WS_SZ = 0x1000000
R_X, R_K, R_V, R_SK, R_KF, R_WG, R_WU, R_WD, R_OUT, R_WS, R_DBG = [4+4*i for i in range(11)]
def srd(r): return s(r, 4)
SW = 48
ST = "sc1"
LD = "sc1"

def prologue(a, name, need):
    a(f".globl {name}\n.p2align 8\n.type {name},@function\n{name}:")
    a(f"s_cmp_ge_u32 s2, {NWG}\ns_cbranch_scc1 {name}_end")
    a("s_load_dwordx16 s[64:79], s[0:1], 0\ns_load_dwordx8 s[80:87], s[0:1], 64\ns_load_dwordx2 s[88:89], s[0:1], 96")
    a("v_lshrrev_b32 v1, 6, v0\nv_and_b32 v0, 63, v0\ns_nop 0")
    a(f"v_readfirstlane_b32 s{SW}, v1")
    tbl = {R_X:(64,S*D*2), R_K:(66,S*D*2), R_V:(68,S*D*2), R_SK:(70,D*8), R_KF:(72,D*S*2), R_WG:(78,D*F*2),
           R_WU:(80,D*F*2), R_WD:(82,D*F*2), R_OUT:(84,S*D*2), R_DBG:(86,256), R_WS:(88,WS_SZ)}
    for r in need:
        a(f"s_mov_b32 s{r+2}, {tbl[r][1]}\ns_mov_b32 s{r+3}, 0x20000")
    a("s_waitcnt lgkmcnt(0)")
    for r in need:
        a(f"s_mov_b32 s{r}, s{tbl[r][0]}\ns_mov_b32 s{r+1}, s{tbl[r][0]+1}")

def bf16round(a, r):
    a(f"v_cvt_pk_bf16_f32 v{r}, v{r}, v{r}\nv_lshlrev_b32 v{r}, 16, v{r}")

def ln_finish(a, vm, vvar):
    bf16round(a, vm)
    bf16round(a, vvar)
    a(f"v_add_f32 v{vvar}, {f32(1e-5)}, v{vvar}")
    bf16round(a, vvar)
    a(f"v_sqrt_f32 v{vvar}, v{vvar}\ns_nop 0")
    bf16round(a, vvar)
    a(f"v_rcp_f32 v{vvar}, v{vvar}\ns_nop 0")

def phase0(a, LB=0):
    a("s_mul_i32 s50, s2, 9363\ns_lshr_b32 s50, s50, 16\ns_mul_i32 s49, s50, 7\ns_sub_u32 s49, s2, s49")
    a(f"s_and_b32 s51, s{SW}, 3")
    a("s_lshl_b32 s52, s49, 7\ns_lshl_b32 s53, s51, 5\ns_add_u32 s52, s52, s53")
    a("s_mul_i32 s53, s50, %d\ns_add_u32 s53, s53, s52" % (64*896))
    a(f"s_lshl_b32 s54, s{SW}, 11\ns_add_u32 s54, s54, {LB}")
    a("v_and_b32 v2, 1, v0\nv_lshrrev_b32 v3, 1, v0\nv_lshlrev_b32 v2, 4, v2")
    a("v_lshrrev_b32 v6, 4, v0\nv_bfe_u32 v7, v0, 1, 1\nv_lshl_add_u32 v6, v6, 1, v7")
    a("v_bfe_u32 v7, v0, 2, 2\nv_lshl_add_u32 v6, v6, 3, v7\nv_lshlrev_b32 v6, 5, v6")
    a("v_and_b32 v7, 1, v0\nv_lshl_add_u32 v4, v7, 3, v6\nv_add_u32 v4, s54, v4")
    a("v_and_b32 v6, 7, v0\nv_lshlrev_b32 v6, 12, v6")
    a("v_lshrrev_b32 v7, 3, v0\nv_lshl_add_u32 v5, v7, 4, v6")
    a("s_lshl_b32 s55, s52, 11\ns_lshl_b32 s56, s50, 7\ns_add_u32 s55, s55, s56")
    lx, ltr = a.label("p0x"), a.label("p0tr")
    a(f"s_cmp_ge_u32 s{SW}, 4\ns_cbranch_scc1 {lx}")
    a("s_movk_i32 s56, 1792\nv_mad_u32_u24 v8, v3, s56, v2\nv_add_u32 v8, s53, v8")
    a("v_subrev_u32 v9, 896, v8\nv_subrev_u32 v10, 1792, v8\nv_subrev_u32 v11, 2688, v8")
    KR, VR, TP = 16, 36, 44
    a(f"buffer_load_dwordx4 {v(KR,4)}, v11, {srd(R_K)}, 0 offen")
    a(f"buffer_load_dwordx4 {v(KR+4,4)}, v10, {srd(R_K)}, 0 offen")
    a(f"buffer_load_dwordx4 {v(KR+8,4)}, v9, {srd(R_K)}, 0 offen")
    a(f"buffer_load_dwordx4 {v(KR+12,4)}, v8, {srd(R_K)}, 0 offen")
    a(f"buffer_load_dwordx4 {v(KR+16,4)}, v8, {srd(R_K)}, 0 offen offset:896")
    a(f"buffer_load_dwordx4 {v(VR,4)}, v8, {srd(R_V)}, 0 offen")
    a(f"buffer_load_dwordx4 {v(VR+4,4)}, v8, {srd(R_V)}, 0 offen offset:896")
    a("v_add_u32 v12, s52, v2\nv_lshlrev_b32 v12, 2, v12")
    for i in range(4):
        a(f"buffer_load_dwordx4 {v(TP+4*i,4)}, v12, {srd(R_SK)}, 0 offen offset:{16*i}")
    a("s_mov_b32 s57, 0x05040100\ns_mov_b32 s58, 0x07060302\ns_mov_b32 s59, 0xffff0000")
    a("v_lshl_add_u32 v13, v3, 6, v2\nv_add_u32 v13, s54, v13")
    a(f"s_add_u32 s55, s55, {KVT}")
    a("s_waitcnt vmcnt(0)")
    P, KS = 60, 92
    for ch in range(8):
        sel = "s58" if ch & 1 else "s57"
        for j in range(4):
            a(f"v_perm_b32 v{P+4*ch+j}, v{KR+4*j+ch//2}, v{KR+4*(j+1)+ch//2}, {sel}")
    for ch in range(8):
        a(f"v_dot2_f32_bf16 v{KS+ch}, v{P+4*ch+0}, v{TP+2*ch+1}, 0")
        a(f"v_dot2_f32_bf16 v{KS+8+ch}, v{P+4*ch+1}, v{TP+2*ch+1}, 0")
    for ch in range(8):
        a(f"v_dot2_f32_bf16 v{KS+ch}, v{P+4*ch+2}, v{TP+2*ch}, v{KS+ch}")
        a(f"v_dot2_f32_bf16 v{KS+8+ch}, v{P+4*ch+3}, v{TP+2*ch}, v{KS+8+ch}")
    U = 16
    for t in range(2):
        for ch in range(8):
            src = VR+4*t+ch//2
            if ch & 1: a(f"v_and_b32 v{U+8*t+ch}, s59, v{src}")
            else:      a(f"v_lshlrev_b32 v{U+8*t+ch}, 16, v{src}")
    for i in range(16):
        a(f"v_mul_f32 v{KS+i}, v{KS+i}, v{U+i}")
    for i in range(8):
        a(f"v_cvt_pk_bf16_f32 v{P+i}, v{KS+2*i}, v{KS+2*i+1}")
    a(f"ds_write_b128 v13, {v(P,4)}\nds_write_b128 v13, {v(P+4,4)} offset:32")
    a(f"s_waitcnt lgkmcnt(0)\ns_branch {ltr}")
    a(f"{lx}:")
    a("s_movk_i32 s56, 896\nv_mad_u32_u24 v8, v3, s56, v2")
    a(f"s_mov_b32 m0, s54\ns_add_u32 s57, s53, {32*896}")
    a(f"buffer_load_dwordx4 v8, {srd(R_X)}, s53 offen lds")
    a("s_add_u32 m0, s54, 1024\ns_nop 0")
    a(f"buffer_load_dwordx4 v8, {srd(R_X)}, s57 offen lds")
    a(f"s_add_u32 s55, s55, {XT}")
    a("v_lshrrev_b32 v9, 4, v0\ns_lshl_b32 s57, s51, 2\nv_add_u32 v9, s57, v9\nv_mul_u32_u24 v9, 7, v9\nv_add_u32 v9, s49, v9")
    a("v_min_u32 v10, 63, v9\ns_lshl_b32 s57, s50, 6\nv_add_u32 v10, s57, v10")
    a("v_and_b32 v11, 15, v0\nv_lshlrev_b32 v12, 4, v11\nv_mad_u32_u24 v12, v10, s56, v12")
    XR, XU = 16, 32
    for i in range(4): a(f"v_mov_b32 v{XR+12+i}, 0")
    for i in range(3):
        a(f"buffer_load_dwordx4 {v(XR+4*i,4)}, v12, {srd(R_X)}, 0 offen offset:{256*i}")
    a("s_mov_b32 s60, 0x00ff00ff\ns_mov_b32 s61, 0x00ff00ff\ns_mov_b64 exec, s[60:61]")
    a(f"buffer_load_dwordx4 {v(XR+12,4)}, v12, {srd(R_X)}, 0 offen offset:768")
    a("s_mov_b64 exec, -1\ns_mov_b32 s59, 0xffff0000\ns_waitcnt vmcnt(0)")
    for i in range(16):
        a(f"v_lshlrev_b32 v{XU+2*i}, 16, v{XR+i}\nv_and_b32 v{XU+2*i+1}, s59, v{XR+i}")
    a(f"v_add_f32 v14, v{XU}, v{XU+1}\nv_add_f32 v15, v{XU+2}, v{XU+3}")
    for i in range(4, 32, 2):
        a(f"v_add_f32 v14, v14, v{XU+i}\nv_add_f32 v15, v15, v{XU+i+1}")
    a("v_add_f32 v14, v14, v15")
    def rowred(r):
        for sh in (8, 4, 2, 1):
            a(f"s_nop 1\nv_add_f32_dpp v{r}, v{r}, v{r} row_ror:{sh} row_mask:0xf bank_mask:0xf")
    rowred(14)
    a(f"v_mul_f32 v14, {f32(1.0/D)}, v14")
    for i in range(32): a(f"v_sub_f32 v{XU+i}, v{XU+i}, v14")
    a(f"v_mul_f32 v15, v{XU}, v{XU}\nv_mul_f32 v13, v{XU+1}, v{XU+1}")
    for i in range(2, 24, 2):
        a(f"v_fmac_f32 v15, v{XU+i}, v{XU+i}\nv_fmac_f32 v13, v{XU+i+1}, v{XU+i+1}")
    a("s_mov_b64 exec, s[60:61]")
    for i in range(24, 32, 2):
        a(f"v_fmac_f32 v15, v{XU+i}, v{XU+i}\nv_fmac_f32 v13, v{XU+i+1}, v{XU+i+1}")
    a("s_mov_b64 exec, -1\nv_add_f32 v15, v15, v13")
    rowred(15)
    a(f"v_mul_f32 v15, {f32(1.0/D)}, v15")
    ln_finish(a, 14, 15)
    a("v_mov_b32 v16, v15\nv_mul_f32 v17, v14, v15\nv_sub_f32 v17, 0, v17")
    a("v_lshlrev_b32 v10, 3, v10")
    lsk = a.label("p0sk")
    a("v_cmp_gt_u32 vcc, 64, v9\nv_cmp_eq_u32 s[60:61], 0, v11\ns_and_b64 vcc, vcc, s[60:61]")
    a(f"s_mov_b32 s57, {ST1}\ns_and_saveexec_b64 s[60:61], vcc\ns_cbranch_execz {lsk}")
    a(f"buffer_store_dwordx2 v[16:17], v10, {srd(R_WS)}, s57 offen {ST}")
    a(f"{lsk}:\ns_mov_b64 exec, -1")
    a(f"{ltr}:")
    for q in range(2):
        for h in range(2):
            a(f"ds_read_b64_tr_b16 {v(20+4*q+2*h,2)}, v4 offset:{16*q+128*h}")
    a("s_add_u32 s56, s55, 32768\ns_waitcnt lgkmcnt(2)")
    a(f"buffer_store_dwordx4 v[20:23], v5, {srd(R_WS)}, s55 offen {ST}")
    a("s_waitcnt lgkmcnt(0)")
    a(f"buffer_store_dwordx4 v[24:27], v5, {srd(R_WS)}, s56 offen {ST}")

def phase1(a, LB=0):
    KVB, KFB, CAR, OUTB = LB, LB+9216, LB+9216+8320, LB+9216+8320+1280
    XF, KFR, ACC, XV, STV, TMP = 16, 80, 96, 128, 136, 152
    a(f"s_lshr_b32 s49, s{SW}, 2\ns_and_b32 s50, s{SW}, 3")
    a("s_lshl_b32 s51, s2, 1\ns_add_u32 s51, s51, s49")
    a("s_lshl_b32 s52, s51, 12\ns_lshl_b32 s53, s50, 10\ns_add_u32 s52, s52, s53")
    a(f"s_mul_i32 s54, s49, 4608\ns_add_u32 s54, s54, {KVB}")
    a(f"s_mul_i32 s55, s49, 4160\ns_add_u32 s55, s55, {KFB}")
    a("v_lshlrev_b32 v2, 4, v0")
    a("s_add_u32 s56, s54, s53\ns_add_u32 m0, s56, 512")
    a(f"s_add_u32 s57, s52, {KVT}")
    a(f"buffer_load_dwordx4 v2, {srd(R_WS)}, s57 offen {LD} lds")
    a("s_add_u32 s56, s55, s53\ns_add_u32 m0, s56, 64\ns_nop 0")
    a(f"buffer_load_dwordx4 v2, {srd(R_KF)}, s52 offen lds")
    a("s_lshl_b32 s56, s2, 2\ns_load_dword s58, s[74:75], s56")
    for i in range(8): a(f"v_mov_b32 v{XV+i}, 0")
    a("v_lshlrev_b32 v3, 1, v0\nv_lshlrev_b32 v4, 3, v0")
    a(f"s_lshl_b32 s56, s51, 12\ns_lshl_b32 s57, s50, 7\ns_add_u32 s56, s56, s57\ns_add_u32 s56, s56, {XT}")
    for i in range(8):
        a(f"buffer_load_short_d16_hi v{XV+i}, v3, {srd(R_WS)}, s56 offen offset:{512*i} {LD}")
    a(f"s_lshl_b32 s57, s50, 9\ns_add_u32 s57, s57, {ST1}")
    for i in range(8):
        if i == 2 or i == 4 or i == 6: a("s_add_u32 s57, s57, 4096")
        a(f"buffer_load_dwordx2 {v(STV+2*i,2)}, v4, {srd(R_WS)}, s57 offen offset:{2048*(i&1)} {LD}")
    lz = a.label("p1z")
    a(f"s_cmp_lg_u32 s50, 0\ns_cbranch_scc1 {lz}")
    a("v_mov_b32 v8, 0\nv_mov_b32 v9, 0\nv_add_u32 v5, s54, v4\nds_write_b64 v5, v[8:9]")
    a("v_and_b32 v5, 7, v0\nv_lshlrev_b32 v5, 3, v5\nv_add_u32 v6, s55, v5\nds_write_b64 v6, v[8:9]")
    a(f"s_mul_i32 s56, s49, 640\ns_add_u32 s56, s56, {CAR}\nv_and_b32 v5, 1, v0\nv_lshlrev_b32 v5, 3, v5\nv_add_u32 v6, s56, v5\nds_write_b64 v6, v[8:9]")
    a(f"{lz}:")
    a("v_lshrrev_b32 v5, 4, v0\nv_bfe_u32 v6, v0, 2, 2\nv_and_b32 v7, 3, v0")
    a("v_lshl_add_u32 v5, v5, 3, v6")
    a("v_lshlrev_b32 v8, 2, v7\nv_sub_u32 v8, v8, v5\nv_lshlrev_b32 v8, 3, v8")
    a("s_lshl_b32 s56, s50, 7\ns_add_u32 s56, s56, s54\ns_add_u32 s56, s56, %d" % (512 - 256 - 8))
    a("v_add_u32 v8, s56, v8")
    a("v_add_u32 v9, v5, v7\nv_lshlrev_b32 v9, 3, v9\ns_add_u32 s56, s55, %d\nv_add_u32 v9, s56, v9" % (64-24))
    a("s_waitcnt vmcnt(16) lgkmcnt(0)\ns_barrier")
    def rdx(j):
        a(f"ds_read_b64_tr_b16 {v(XF+4*j,2)}, v8 offset:{256*j+32}\nds_read_b64_tr_b16 {v(XF+4*j+2,2)}, v8 offset:{256*j}")
    def rdk(k):
        r = KFR + 4*(k & 3)
        a(f"ds_read_b64_tr_b16 {v(r,2)}, v9 offset:{256*k}\nds_read_b64_tr_b16 {v(r+2,2)}, v9 offset:{256*k+32}")
    rdk(0)
    for j in range(1, 16, 2): rdx(j)
    a("s_waitcnt lgkmcnt(8)")
    rdk(1)
    for j in range(0, 16, 2): rdx(j)
    a("s_waitcnt lgkmcnt(0)")
    rdk(2); rdk(3)
    for k in range(16):
        if k >= 2:
            a("s_waitcnt lgkmcnt(%d)" % (2*min(1, 15-k) if k < 15 else 0))
        for nu in range(8):
            j = 2*nu + 1 - k
            if j < 0: continue
            cin = "0" if k == 0 else v(ACC+4*nu,4)
            a(f"v_mfma_f32_16x16x32_bf16 {v(ACC+4*nu,4)}, {v(XF+4*j,4)}, {v(KFR+4*(k&3),4)}, {cin}")
        if 2 <= k+2 < 16 and k >= 2: rdk(k+2)
    a("s_nop 7\ns_nop 1")
    dpp = "wave_shr:1 row_mask:0xf bank_mask:0xf bound_ctrl:0"
    for st in (2, 1, 0):
        for nu in range(8):
            a(f"v_add_f32_dpp v{ACC+4*nu+st}, v{ACC+4*nu+st+1}, v{ACC+4*nu+st} {dpp}")
    a(f"s_mul_i32 s56, s49, 640\ns_lshl_b32 s57, s50, 4\ns_add_u32 s56, s56, s57\ns_add_u32 s56, s56, {CAR}")
    a("v_mov_b32 v10, s56\ns_mov_b32 s60, 0\ns_mov_b32 s61, 0x80000000\ns_mov_b64 exec, s[60:61]")
    for nu in range(8):
        a(f"ds_write_b128 v10, {v(ACC+4*nu,4)} offset:{64*nu+16}")
    a("s_mov_b64 exec, -1")
    KVV, CV = XF, XF+8
    for i in range(16): a(f"v_mov_b32 v{KVV+i}, 0")
    a("s_lshl_b32 s57, s50, 7\ns_add_u32 s57, s57, s54\nv_add_u32 v11, s57, v3")
    for nu in range(8):
        a(f"ds_read_u16_d16_hi v{KVV+nu}, v11 offset:{512+512*nu}")
    a("s_waitcnt lgkmcnt(0)\ns_barrier")
    a("v_lshl_add_u32 v10, v0, 2, v10\ns_mov_b64 exec, 7")
    for nu in range(8):
        a(f"ds_read_b32 v{CV+nu}, v10 offset:{64*nu+4}")
    a("s_mov_b64 exec, -1")
    a("s_lshl_b32 s59, s58, 16\ns_and_b32 s58, s58, 0xffff0000\ns_cmp_eq_u32 s49, 0\ns_cselect_b32 s58, s59, s58")
    a("s_waitcnt vmcnt(0)")
    for nu in range(8):
        a(f"v_fmac_f32 v{ACC+4*nu}, s58, v{KVV+nu}")
        a(f"v_fma_f32 v{STV+2*nu}, v{XV+nu}, v{STV+2*nu}, v{STV+2*nu+1}")
    a("s_waitcnt lgkmcnt(0)")
    for nu in range(8): a(f"v_add_f32 v{ACC+4*nu}, v{ACC+4*nu}, v{CV+nu}")
    for nu in range(8): a(f"v_fmac_f32 v{XV+nu}, v{STV+2*nu}, v{ACC+4*nu}")
    for nu in range(0, 8, 2): a(f"v_cvt_pk_bf16_f32 v{XV+nu}, v{XV+nu}, v{XV+nu+1}")
    a(f"s_lshl_b32 s56, s{SW}, 10\ns_add_u32 s56, s56, {OUTB}\nv_add_u32 v11, s56, v3\nv_add_u32 v12, s56, v2")
    for nu in range(0, 8, 2):
        a(f"ds_write_b16 v11, v{XV+nu} offset:{128*nu}\nds_write_b16_d16_hi v11, v{XV+nu} offset:{128*nu+128}")
    a("s_waitcnt lgkmcnt(0)\nds_read_b128 v[16:19], v12")
    a("v_lshrrev_b32 v5, 3, v0\ns_mov_b32 s56, %d\nv_mul_lo_u32 v5, v5, s56\nv_and_b32 v6, 7, v0\nv_lshl_add_u32 v5, v6, 4, v5" % (2*114688))
    a("s_lshr_b32 s56, s50, 1\ns_mul_i32 s56, s56, 114688\ns_lshl_b32 s57, s51, 8\ns_add_u32 s56, s56, s57")
    a(f"s_and_b32 s57, s50, 1\ns_lshl_b32 s57, s57, 7\ns_add_u32 s56, s56, s57\ns_add_u32 s56, s56, {HT}")
    a("s_waitcnt lgkmcnt(0)")
    a(f"buffer_store_dwordx4 v[16:19], v5, {srd(R_WS)}, s56 offen {ST}")

def map23(a):
    a("s_and_b32 s94, s2, 7\ns_lshr_b32 s95, s2, 3")
    a("s_and_b32 s90, s95, 3\ns_and_b32 s96, s94, 3\ns_lshl_b32 s96, s96, 2\ns_add_u32 s90, s90, s96")
    a("s_lshr_b32 s93, s95, 2\ns_lshr_b32 s96, s94, 2\ns_mul_i32 s91, s96, 7\ns_add_u32 s91, s91, s93")
    a("s_lshl_b32 s92, s90, 1\ns_add_u32 s92, s92, s96")

W1R, ACC2, BF, CS = 144, 80, 48, 32
def w1_issue(a, batch):
    a("v_lshrrev_b32 v4, 4, v0\nv_and_b32 v5, 15, v0\nv_lshlrev_b32 v6, 2, v4\nv_xor_b32 v5, v5, v6")
    a("s_movk_i32 s56, 3584\nv_lshlrev_b32 v6, 4, v5\nv_mad_u32_u24 v2, v4, s56, v6\nv_xor_b32 v3, 32, v2")
    a(f"s_mul_i32 s57, s{SW}, {4*3584}\ns_lshl_b32 s58, s91, 8\ns_add_u32 s57, s57, s58\ns_add_u32 s57, s57, {batch*7*32*3584}")
    a(f"s_lshl_b32 s58, s{SW}, 10")
    for sl in range(7):
        a(f"s_add_u32 m0, s58, {sl*16384}\ns_add_u32 s59, s57, {sl*32*3584}")
        a(f"buffer_load_dwordx4 v2, {srd(R_WG)}, s59 offen lds")
        a(f"s_add_u32 m0, s58, {sl*16384+8192}\ns_nop 0")
        a(f"buffer_load_dwordx4 v3, {srd(R_WU)}, s59 offen lds")
def w1_read(a, batch):
    a("v_bfe_u32 v4, v0, 4, 1\nv_lshrrev_b32 v5, 5, v0\nv_bfe_u32 v6, v0, 2, 2\nv_and_b32 v7, 3, v0")
    a("v_lshl_add_u32 v8, v6, 1, v4")
    a(f"v_xor_b32 v8, s{SW}, v8\nv_lshlrev_b32 v8, 5, v8\nv_lshl_add_u32 v8, v7, 3, v8")
    a("v_lshl_add_u32 v5, v5, 3, v6\nv_lshl_add_u32 v8, v5, 8, v8\nv_lshl_add_u32 v8, v4, 13, v8")
    a(f"s_lshr_b32 s56, s{SW}, 2\ns_lshl_b32 s56, s56, 10\nv_add_u32 v8, s56, v8\nv_xor_b32 v9, 1024, v8")
    a("v_add_u32 v10, 0x10000, v8\nv_add_u32 v11, 0x10000, v9")
    for kl in range(14):
        off = (kl >> 1)*16384 + (kl & 1)*4096
        ra, rb = (8, 9) if off < 65536 else (10, 11)
        off &= 0xffff
        r = W1R + 4*(14*batch + kl)
        a(f"ds_read_b64_tr_b16 {v(r,2)}, v{ra} offset:{off}\nds_read_b64_tr_b16 {v(r+2,2)}, v{rb} offset:{off}")
        if kl == 6: a("s_waitcnt lgkmcnt(0)")
    a("s_waitcnt lgkmcnt(0)")
def colsum(a):
    for i in range(4): a(f"v_mov_b32 v{BF+i}, 0x3f803f80")
    a("s_nop 1")
    for k in range(28):
        cin = "0" if k == 0 else v(CS,16)
        a(f"v_mfma_f32_32x32x16_bf16 {v(CS,16)}, {v(W1R+4*k,4)}, {v(BF,4)}, {cin}")

def phase2(a):
    STB = 114688
    a("v_lshrrev_b32 v4, 4, v0\nv_lshlrev_b32 v5, 2, v4\nv_xor_b32 v5, v5, v0\nv_lshlrev_b32 v2, 4, v5")
    a(f"s_mul_i32 s57, s90, 114688\ns_lshl_b32 s58, s{SW}, 10\ns_add_u32 s57, s57, s58\ns_add_u32 s57, s57, {HT}")
    for j in range(14):
        a(f"s_add_u32 m0, s58, {j*8192}\ns_add_u32 s59, s57, {j*8192}")
        a(f"buffer_load_dwordx4 v2, {srd(R_WS)}, s59 offen {LD} lds")
    a("v_bfe_u32 v4, v0, 4, 1\nv_lshrrev_b32 v5, 5, v0\nv_bfe_u32 v6, v0, 2, 2\nv_and_b32 v7, 3, v0")
    a(f"s_and_b32 s56, s{SW}, 3\nv_xor_b32 v8, s56, v6\nv_lshlrev_b32 v8, 6, v8")
    a("v_lshl_add_u32 v8, v4, 5, v8\nv_lshl_add_u32 v8, v7, 3, v8\nv_lshl_add_u32 v5, v5, 3, v6\nv_lshl_add_u32 v8, v5, 8, v8")
    a(f"s_lshr_b32 s56, s{SW}, 2\ns_lshl_b32 s56, s56, 10\nv_add_u32 v16, s56, v8")
    for t in range(1, 4): a(f"v_xor_b32 v{16+t}, {64*t}, v16")
    for t in range(4): a(f"v_xor_b32 v{20+t}, 1024, v{16+t}")
    a("v_mov_b32 v24, 0\nv_mov_b32 v25, 0\nv_mov_b32 v26, 0\nv_mov_b32 v27, 0\ns_mov_b32 s59, 0xffff0000")
    def rd(k):
        off = (k & 15)*4096
        b = BF + 16*(k & 1)
        for t in range(4):
            a(f"ds_read_b64_tr_b16 {v(b+4*t,2)}, v{16+t} offset:{off}\nds_read_b64_tr_b16 {v(b+4*t+2,2)}, v{20+t} offset:{off}")
    a("s_waitcnt vmcnt(13)\ns_barrier")
    rd(0)
    for k in range(28):
        if k == 1: a("s_waitcnt vmcnt(10)\ns_barrier")
        if k == 7: a("s_waitcnt vmcnt(0)\ns_barrier")
        if k == 15:
            for t in range(8): a(f"v_add_u32 v{16+t}, 0x10000, v{16+t}")
        if k < 27:
            rd(k+1)
            a("s_waitcnt lgkmcnt(8)")
        else:
            a("s_waitcnt lgkmcnt(0)")
        b = BF + 16*(k & 1)
        st = [f"v_lshlrev_b32 v28, 16, v{b}", f"v_and_b32 v29, s59, v{b}", f"v_lshlrev_b32 v30, 16, v{b+1}", f"v_and_b32 v31, s59, v{b+1}",
              "v_add_f32 v24, v24, v28", "v_add_f32 v25, v25, v29", "v_fmac_f32 v26, v28, v28", "v_fmac_f32 v27, v29, v29",
              "v_add_f32 v24, v24, v30", "v_add_f32 v25, v25, v31", "v_fmac_f32 v26, v30, v30", "v_fmac_f32 v27, v31, v31"]
        for t in range(4):
            cin = "0" if k == 0 else v(ACC2+16*t,16)
            a(f"v_mfma_f32_32x32x16_bf16 {v(ACC2+16*t,16)}, {v(W1R+4*k,4)}, {v(b+4*t,4)}, {cin}")
            for x in st[3*t:3*t+3]: a(x)
    a("v_add_f32 v24, v24, v25\nv_add_f32 v25, v26, v27")
    a(f"s_and_b32 s56, s{SW}, 3\ns_lshl_b32 s56, s56, 10\ns_lshr_b32 s57, s{SW}, 2\ns_lshl_b32 s57, s57, 4\ns_add_u32 s57, s57, s56\ns_add_u32 s57, s57, {STB}")
    a("v_and_b32 v4, 31, v0\nv_lshlrev_b32 v4, 5, v4\nv_lshrrev_b32 v5, 5, v0\nv_lshl_add_u32 v5, v5, 3, v4\nv_add_u32 v5, s57, v5")
    a("ds_write_b64 v5, v[24:25]")
    a(f"s_add_u32 s56, s56, {STB}\nv_add_u32 v4, s56, v4")
    a("s_waitcnt lgkmcnt(0)\ns_barrier")
    for t in range(4):
        a(f"v_xor_b32 v5, {1024*t}, v4\nds_read_b128 {v(BF+8*t,4)}, v5\nds_read_b128 {v(BF+8*t+4,4)}, v5 offset:16")
    a("s_waitcnt lgkmcnt(0)")
    MV, RV = 16, 20
    for t in range(4):
        b = BF+8*t
        a(f"v_add_f32 v{b}, v{b}, v{b+2}\nv_add_f32 v{b+4}, v{b+4}, v{b+6}\nv_add_f32 v{b+1}, v{b+1}, v{b+3}\nv_add_f32 v{b+5}, v{b+5}, v{b+7}")
        a(f"v_add_f32 v{b}, v{b}, v{b+4}\nv_add_f32 v{b+1}, v{b+1}, v{b+5}")
        a(f"v_mul_f32 v{MV+t}, {f32(1.0/D)}, v{b}\nv_mul_f32 v{RV+t}, {f32(1.0/D)}, v{b+1}")
        a(f"v_fma_f32 v{RV+t}, -v{MV+t}, v{MV+t}, v{RV+t}\nv_max_f32 v{RV+t}, 0, v{RV+t}")
        ln_finish(a, MV+t, RV+t)
    c0 = -2.0*math.sqrt(2.0/math.pi)*math.log2(math.e)
    a(f"s_mov_b32 s60, {f32(c0*0.044715)}\nv_mov_b32 v24, {f32(c0)}")
    a(f"v_lshlrev_b32 v2, 4, v0\ns_lshl_b32 s56, s91, 3\ns_add_u32 s56, s56, s{SW}\ns_lshl_b32 s56, s56, 10\ns_add_u32 s56, s56, {GG}")
    a(f"s_and_b32 s57, s{SW}, 3\ns_lshl_b32 s58, s90, 2")
    T0, T1 = BF, BF+8
    for t in range(4):
        A = ACC2+16*t
        for i in range(16): a(f"v_fma_f32 v{A+i}, -v{MV+t}, v{CS+i}, v{A+i}")
        for i in range(16): a(f"v_mul_f32 v{A+i}, v{A+i}, v{RV+t}")
        for i in range(8): a(f"v_mul_f32 v{T0+i}, v{A+i}, v{A+i}")
        for i in range(8): a(f"v_fma_f32 v{T0+i}, v{T0+i}, s60, v24")
        for i in range(8): a(f"v_mul_f32 v{T0+i}, v{T0+i}, v{A+i}")
        for i in range(8): a(f"v_exp_f32 v{T0+i}, v{T0+i}")
        for i in range(8): a(f"v_mul_f32 v{A+i}, v{A+i}, v{A+8+i}")
        for i in range(8): a(f"v_add_f32 v{T0+i}, 1.0, v{T0+i}")
        for i in range(8): a(f"v_rcp_f32 v{T0+i}, v{T0+i}")
        a(f"s_xor_b32 s59, s57, {t}\ns_add_u32 s59, s59, s58\ns_mul_i32 s59, s59, {112*1024}\ns_add_u32 s59, s59, s56")
        for i in range(8): a(f"v_mul_f32 v{A+i}, v{A+i}, v{T0+i}")
        for i in range(4): a(f"v_cvt_pk_bf16_f32 v{A+8+i}, v{A+2*i}, v{A+2*i+1}")
        a(f"buffer_store_dwordx4 {v(A+8,4)}, v2, {srd(R_WS)}, s59 offen {ST}")

def phase3(a):
    WREG = 18432
    HB = 8*WREG
    ACC3, AF, GF = 16, 80, 96
    a("v_lshrrev_b32 v4, 3, v0\nv_bfe_u32 v5, v0, 4, 1\nv_lshlrev_b32 v5, 2, v5\nv_and_b32 v6, 7, v0\nv_xor_b32 v5, v5, v6")
    a("s_movk_i32 s56, 896\nv_lshlrev_b32 v5, 4, v5\nv_mad_u32_u24 v2, v4, s56, v5")
    a(f"s_mul_i32 s57, s{SW}, {224*896}\ns_lshl_b32 s58, s93, 7\ns_add_u32 s57, s57, s58\ns_mul_i32 s58, s{SW}, {WREG}")
    def wd(k):
        sl = k % 9
        for hf in range(2):
            a(f"s_add_u32 m0, s58, {sl*2048+hf*1024}\ns_add_u32 s59, s57, {(16*k+8*hf)*896}")
            a(f"buffer_load_dwordx4 v2, {srd(R_WD)}, s59 offen lds")
    a(f"v_lshlrev_b32 v3, 4, v0\ns_mul_i32 s60, s92, {2*112*1024}\ns_mul_i32 s61, s{SW}, {14*1024}\ns_add_u32 s60, s60, s61\ns_add_u32 s60, s60, {GG}")
    def gl(k):
        for nt in range(2):
            a(f"s_add_u32 s59, s60, {nt*112*1024 + k*1024}")
            a(f"buffer_load_dwordx4 {v(GF+8*k+4*nt,4)}, v3, {srd(R_WS)}, s59 offen {LD}")
    a("v_lshlrev_b32 v5, 4, v6\nv_lshl_add_u32 v7, v4, 8, v5")
    a(f"s_lshr_b32 s61, s92, 1\ns_mul_i32 s61, s61, 114688\ns_and_b32 s62, s92, 1\ns_lshl_b32 s62, s62, 7\ns_add_u32 s61, s61, s62")
    a(f"s_lshl_b32 s62, s93, 14\ns_add_u32 s61, s61, s62\ns_lshl_b32 s62, s{SW}, 11\ns_add_u32 s61, s61, s62\ns_add_u32 s61, s61, {HT}")
    a(f"s_lshl_b32 s62, s{SW}, 10\ns_add_u32 m0, s62, {HB}\ns_nop 0")
    a(f"buffer_load_dwordx4 v7, {srd(R_WS)}, s61 offen {LD} lds")
    seq = []
    for k in range(9):
        wd(k); gl(k); seq += [("w",k)]*2 + [("g",k)]*2
    for k in range(9, 14):
        gl(k); seq += [("g",k)]*2
    a("v_bfe_u32 v4, v0, 4, 1\nv_lshrrev_b32 v5, 5, v0\nv_bfe_u32 v6, v0, 2, 2\nv_and_b32 v7, 3, v0")
    a("v_lshl_add_u32 v5, v5, 2, v6\nv_lshlrev_b32 v8, 7, v5\nv_lshrrev_b32 v6, 1, v6\nv_lshl_add_u32 v8, v6, 6, v8")
    a("v_lshl_add_u32 v8, v4, 5, v8\nv_lshl_add_u32 v8, v7, 3, v8\nv_add_u32 v8, s58, v8\nv_xor_b32 v9, 64, v8")
    def need(k):
        last = max(i for i, e in enumerate(seq) if e[1] == k)
        return len(seq) - 1 - last
    for k in range(14):
        a(f"s_waitcnt vmcnt({need(k)})")
        b = AF + 8*(k & 1)
        off = (k % 9)*2048
        for mt in range(2):
            a(f"ds_read_b64_tr_b16 {v(b+4*mt,2)}, v{8+mt} offset:{off}\nds_read_b64_tr_b16 {v(b+4*mt+2,2)}, v{8+mt} offset:{off+1024}")
        a("s_waitcnt lgkmcnt(0)")
        if k + 9 < 14:
            wd(k+9); seq += [("w",k+9)]*2
        for nt in range(2):
            for mt in range(2):
                A = ACC3 + 16*(2*nt+mt)
                cin = "0" if k == 0 else v(A,16)
                a(f"v_mfma_f32_32x32x16_bf16 {v(A,16)}, {v(b+4*mt,4)}, {v(GF+8*k+4*nt,4)}, {cin}")
    a("v_add_u32 v4, s58, v3\ns_nop 7\ns_nop 3")
    for i in range(16):
        a(f"ds_write_b128 v4, {v(ACC3+4*i,4)} offset:{1088*i}")
    a("s_waitcnt lgkmcnt(0)\ns_barrier")
    a("v_lshrrev_b32 v4, 5, v0\nv_and_b32 v5, 3, v0\nv_lshl_add_u32 v4, v4, 2, v5\nv_bfe_u32 v6, v0, 2, 3")
    a(f"s_and_b32 s56, s{SW}, 3\ns_lshl_b32 s56, s56, 7\ns_lshr_b32 s57, s{SW}, 2\ns_mul_i32 s57, s57, {8*1088}\ns_add_u32 s56, s56, s57")
    a("s_movk_i32 s57, 1088\nv_lshlrev_b32 v7, 4, v4\nv_mad_u32_u24 v7, v6, s57, v7\nv_add_u32 v7, s56, v7")
    a(f"v_add_u32 v8, {3*WREG}, v7\nv_add_u32 v9, {6*WREG}, v7")
    PR = 96
    for p in range(8):
        for hh in range(2):
            a(f"ds_read_b128 {v(PR+8*p+4*hh,4)}, v{7+p//3} offset:{(p%3)*WREG+512*hh}")
        if p == 3: a("s_waitcnt lgkmcnt(0)")
    a("v_bfe_u32 v10, v0, 4, 1\nv_lshl_add_u32 v10, v10, 2, v5\nv_bfe_u32 v11, v0, 2, 2\nv_lshl_add_u32 v10, v10, 3, v11\nv_lshlrev_b32 v10, 7, v10")
    a(f"v_lshrrev_b32 v11, 5, v0\nv_lshl_add_u32 v10, v11, 3, v10\ns_lshl_b32 s56, s{SW}, 4\ns_add_u32 s56, s56, {HB}\nv_add_u32 v10, s56, v10")
    a("ds_read_b64_tr_b16 v[12:13], v10\nds_read_b64_tr_b16 v[14:15], v10 offset:512")
    a("s_mov_b32 s59, 0xffff0000\ns_waitcnt lgkmcnt(0)")
    for st in (4, 2, 1):
        for p in range(st):
            for i in range(8): a(f"v_add_f32 v{PR+8*p+i}, v{PR+8*p+i}, v{PR+8*(p+st)+i}")
    for i in range(4):
        a(f"v_lshlrev_b32 v{16+2*i}, 16, v{12+i}\nv_and_b32 v{17+2*i}, s59, v{12+i}")
    for i in range(4):
        a(f"v_cvt_pk_bf16_f32 v{24+i}, v{PR+2*i}, v{PR+2*i+1}")
    for i in range(4):
        a(f"v_lshlrev_b32 v{PR+2*i}, 16, v{24+i}\nv_and_b32 v{PR+2*i+1}, s59, v{24+i}")
    for i in range(8): a(f"v_add_f32 v{PR+i}, v{PR+i}, v{16+i}")
    for i in range(4): a(f"v_cvt_pk_bf16_f32 v{24+i}, v{PR+2*i}, v{PR+2*i+1}")
    a("s_movk_i32 s57, 896\nv_lshlrev_b32 v6, 4, v6\nv_mad_u32_u24 v4, v4, s57, v6")
    a(f"s_lshl_b32 s56, s92, 3\ns_add_u32 s56, s56, s{SW}\ns_mul_i32 s56, s56, {8*896}\ns_lshl_b32 s57, s93, 7\ns_add_u32 s56, s56, s57")
    a(f"buffer_store_dwordx4 v[24:27], v4, {srd(R_OUT)}, s56 offen")

def kd(name, nv):
    return f""".p2align 6
.amdhsa_kernel {name}
  .amdhsa_next_free_vgpr {nv}
  .amdhsa_next_free_sgpr 102
  .amdhsa_accum_offset {nv}
  .amdhsa_group_segment_fixed_size 0
  .amdhsa_kernarg_size 104
  .amdhsa_user_sgpr_count 2
  .amdhsa_user_sgpr_kernarg_segment_ptr 1
  .amdhsa_system_sgpr_workgroup_id_x 1
.end_amdhsa_kernel"""

def main(out):
    a = Asm()
    hdr = open("cdna_kernels/%s.s.ref" % NAME).read().split("; Override launch geometry")[0]
    ks = [("p0_kernel", 16384), ("p1_kernel", 32768), ("p2_kernel", 163840), ("p3_kernel", 163840)]
    for n, l in ks:
        hdr += f"; @launch kernel={n} grid=({NWG},1,1) block=(512,1,1) lds={l}\n"
    a('.amdgcn_target "amdgcn-amd-amdhsa--gfx950"\n.text')
    prologue(a, "p0_kernel", [R_X, R_K, R_V, R_SK, R_WS]); phase0(a); a("p0_kernel_end:\ns_endpgm")
    prologue(a, "p1_kernel", [R_KF, R_WS]); phase1(a); a("p1_kernel_end:\ns_endpgm")
    prologue(a, "p2_kernel", [R_WG, R_WU, R_WS]); map23(a)
    for b in range(2):
        w1_issue(a, b); a("s_waitcnt vmcnt(0)\ns_barrier"); w1_read(a, b); a("s_barrier")
    colsum(a); phase2(a); a("p2_kernel_end:\ns_endpgm")
    prologue(a, "p3_kernel", [R_WD, R_OUT, R_WS]); map23(a); phase3(a); a("p3_kernel_end:\ns_endpgm")
    a('.section .rodata,"a"')
    for n, l in ks: a(kd(n, 256))
    open(out, "w").write(hdr + a.text())

if __name__ == "__main__":
    main(sys.argv[1] if len(sys.argv) > 1 else "k1.s")
```

```python
import sys, math
from asmlib import *

NAME = "sequential_preLN__ssm_conv_h3__geglu_ffn__prompt"
S, D, F = 2048, 448, 1792
NWG = 224
KVT, XT, ST1, HT, GG, FLG = 0, 0x200000, 0x400000, 0x500000, 0x800000, 0xF00000
EPOCH = FLG + 0x20000
WS_SZ = 0x2000000
R_X, R_K, R_V, R_SK, R_KF, R_WG, R_WU, R_WD, R_OUT, R_WS = [4+4*i for i in range(10)]
def srd(r): return s(r, 4)
SW = 48
STAG = 47
ST = "sc1"
LD = "sc1"
L_P0 = 114688
L_P1 = L_P0 + 16384
L_STB = 155648
OPT = dict(w1a="early")

STAMPS = False
STAMP_NAMES = []
def stamp(a, name):
    if not STAMPS: return
    i = len(STAMP_NAMES); STAMP_NAMES.append(name)
    a(f"s_memrealtime s[98:99]\ns_memtime s[100:101]\ns_waitcnt lgkmcnt(0)\nv_writelane_b32 v1, s98, {i}\nv_writelane_b32 v1, s100, {i+32}")
def stamp_flush(a, kidx):
    if not STAMPS: return
    a(f"s_lshl_b32 s98, s2, 3\ns_add_u32 s98, s98, s{SW}\ns_lshl_b32 s98, s98, 8\ns_add_u32 s98, s98, {0x1000000 + kidx*0x80000}")
    a(f"v_lshlrev_b32 v0, 2, v0\nbuffer_store_dword v1, v0, {srd(R_WS)}, s98 offen")

def prologue(a, name):
    a(f".globl {name}\n.p2align 8\n.type {name},@function\n{name}:")
    a(f"s_cmp_ge_u32 s2, {NWG}\ns_cbranch_scc1 L_end")
    if STAMPS: a("s_memrealtime s[96:97]")
    a("s_load_dwordx16 s[64:79], s[0:1], 0\ns_load_dwordx8 s[80:87], s[0:1], 64\ns_load_dwordx2 s[88:89], s[0:1], 96")
    a("v_lshrrev_b32 v1, 6, v0\nv_and_b32 v0, 63, v0\ns_nop 0")
    a(f"v_readfirstlane_b32 s{SW}, v1")
    tbl = {R_X:(64,S*D*2), R_K:(66,S*D*2), R_V:(68,S*D*2), R_SK:(70,D*8), R_KF:(72,D*S*2), R_WG:(78,D*F*2),
           R_WU:(80,D*F*2), R_WD:(82,D*F*2), R_OUT:(84,S*D*2), R_WS:(88,WS_SZ)}
    for r in tbl:
        a(f"s_mov_b32 s{r+2}, {tbl[r][1]}\ns_mov_b32 s{r+3}, 0x20000")
    map23(a)
    a("s_waitcnt lgkmcnt(0)")
    if STAMPS:
        a(f"v_mov_b32 v1, 0\nv_writelane_b32 v1, s96, {len(STAMP_NAMES)}"); STAMP_NAMES.append("start")
        stamp(a, "kernarg")
    for r in tbl:
        a(f"s_mov_b32 s{r}, s{tbl[r][0]}\ns_mov_b32 s{r+1}, s{tbl[r][0]+1}")

def bf16round(a, r):
    a(f"v_cvt_pk_bf16_f32 v{r}, v{r}, v{r}\nv_lshlrev_b32 v{r}, 16, v{r}")

def ln_finish(a, vm, vvar):
    bf16round(a, vm)
    bf16round(a, vvar)
    a(f"v_add_f32 v{vvar}, {f32(1e-5)}, v{vvar}")
    bf16round(a, vvar)
    a(f"v_sqrt_f32 v{vvar}, v{vvar}\ns_nop 0")
    bf16round(a, vvar)
    a(f"v_rcp_f32 v{vvar}, v{vvar}\ns_nop 0")

def signal(a, ph):
    lab = a.label("sig")
    a(f"s_cmp_lg_u32 s{SW}, 0\ns_cbranch_scc1 {lab}")
    if ph < 2: a(f"s_lshl_b32 s56, s2, 6")
    else:      a(f"s_lshl_b32 s56, s90, 4\ns_add_u32 s56, s56, s91\ns_lshl_b32 s56, s56, 6")
    a(f"s_add_u32 s56, s56, {FLG + ph*0x4000}\nv_mov_b32 v2, s{STAG}\ns_mov_b64 exec, 1")
    a(f"buffer_store_dword v2, off, {srd(R_WS)}, s56 sc1")
    if ph == 2:
        l2 = a.label("ep")
        a(f"s_cmp_lg_u32 s2, 0\ns_cbranch_scc1 {l2}\ns_mov_b32 s56, {EPOCH}\nbuffer_store_dword v2, off, {srd(R_WS)}, s56 sc1\n{l2}:")
    a(f"s_mov_b64 exec, -1\n{lab}:")
def wait(a, ph):
    lab, lp = a.label("wt"), a.label("poll")
    a(f"s_cmp_lg_u32 s{SW}, 0\ns_cbranch_scc1 {lab}")
    if ph < 2:
        n = 4
        for q in range(4):
            a(f"v_add_u32 v2, {64*q}, v0\nv_min_u32 v2, {NWG-1}, v2\nv_lshlrev_b32 v{4+q}, 6, v2")
        a(f"s_mov_b32 s56, {FLG + ph*0x4000}")
    else:
        n = 1
        a(f"v_min_u32 v2, 13, v0\nv_lshlrev_b32 v4, 6, v2\ns_lshl_b32 s56, s90, 10\ns_add_u32 s56, s56, {FLG + ph*0x4000}")
    a(f"s_mov_b32 s57, 0\n{lp}:")
    for q in range(n): a(f"buffer_load_dword v{8+q}, v{4+q}, {srd(R_WS)}, s56 offen sc1")
    a(f"s_add_u32 s57, s57, 1\ns_cmp_gt_u32 s57, 0x40000\ns_cbranch_scc1 {lab}\ns_waitcnt vmcnt(0)")
    for q in range(n): a(f"v_xor_b32 v{8+q}, s{STAG}, v{8+q}")
    if n == 4: a("v_or_b32 v8, v8, v9\nv_or3_b32 v8, v8, v10, v11")
    a(f"v_cmp_ne_u32 vcc, 0, v8\ns_cbranch_vccnz {lp}")
    a(f"{lab}:\ns_barrier")

def phase0(a, after_loads):
    LB = L_P0
    a("s_mul_i32 s50, s2, 9363\ns_lshr_b32 s50, s50, 16\ns_mul_i32 s49, s50, 7\ns_sub_u32 s49, s2, s49")
    a(f"s_and_b32 s51, s{SW}, 3")
    a("s_lshl_b32 s52, s49, 7\ns_lshl_b32 s53, s51, 5\ns_add_u32 s52, s52, s53")
    a("s_mul_i32 s53, s50, %d\ns_add_u32 s53, s53, s52" % (64*896))
    a(f"s_lshl_b32 s54, s{SW}, 11\ns_add_u32 s54, s54, {LB}")
    a("v_and_b32 v2, 1, v0\nv_lshrrev_b32 v3, 1, v0\nv_lshlrev_b32 v2, 4, v2")
    a("s_lshl_b32 s55, s52, 11\ns_lshl_b32 s56, s50, 7\ns_add_u32 s55, s55, s56")
    lx, ltr = a.label("p0x"), a.label("p0tr")
    def traddr():
        a("v_lshrrev_b32 v6, 4, v0\nv_bfe_u32 v7, v0, 1, 1\nv_lshl_add_u32 v6, v6, 1, v7")
        a("v_bfe_u32 v7, v0, 2, 2\nv_lshl_add_u32 v6, v6, 3, v7\nv_lshlrev_b32 v6, 5, v6")
        a("v_and_b32 v7, 1, v0\nv_lshl_add_u32 v4, v7, 3, v6\nv_add_u32 v4, s54, v4")
        a("v_and_b32 v6, 7, v0\nv_lshlrev_b32 v6, 12, v6")
        a("v_lshrrev_b32 v7, 3, v0\nv_lshl_add_u32 v5, v7, 4, v6")
    def trstore():
        for q in range(2):
            for h in range(2):
                a(f"ds_read_b64_tr_b16 {v(108+4*q+2*h,2)}, v4 offset:{16*q+128*h}")
        a("s_add_u32 s56, s55, 32768\ns_waitcnt lgkmcnt(2)")
        a(f"buffer_store_dwordx4 v[108:111], v5, {srd(R_WS)}, s55 offen {ST}")
        a("s_waitcnt lgkmcnt(0)")
        a(f"buffer_store_dwordx4 v[112:115], v5, {srd(R_WS)}, s56 offen {ST}")
    a(f"s_cmp_ge_u32 s{SW}, 4\ns_cbranch_scc1 {lx}")
    a("s_movk_i32 s56, 1792\nv_mad_u32_u24 v8, v3, s56, v2\nv_add_u32 v8, s53, v8")
    a("v_subrev_u32 v9, 896, v8\nv_subrev_u32 v10, 1792, v8\nv_subrev_u32 v11, 2688, v8")
    KR, VR, TP = 16, 36, 44
    a(f"buffer_load_dwordx4 {v(KR+12,4)}, v8, {srd(R_K)}, 0 offen")
    a(f"buffer_load_dwordx4 {v(KR+16,4)}, v8, {srd(R_K)}, 0 offen offset:896")
    a(f"buffer_load_dwordx4 {v(VR,4)}, v8, {srd(R_V)}, 0 offen")
    a(f"buffer_load_dwordx4 {v(VR+4,4)}, v8, {srd(R_V)}, 0 offen offset:896")
    a(f"buffer_load_dwordx4 {v(KR,4)}, v11, {srd(R_K)}, 0 offen")
    a(f"buffer_load_dwordx4 {v(KR+4,4)}, v10, {srd(R_K)}, 0 offen")
    a(f"buffer_load_dwordx4 {v(KR+8,4)}, v9, {srd(R_K)}, 0 offen")
    a("v_add_u32 v12, s52, v2\nv_lshlrev_b32 v12, 2, v12")
    for i in range(4):
        a(f"buffer_load_dwordx4 {v(TP+4*i,4)}, v12, {srd(R_SK)}, 0 offen offset:{16*i}")
    a(f"s_mov_b32 s56, {EPOCH}\nbuffer_load_dword v14, off, {srd(R_WS)}, s56 sc1")
    a("v_lshl_add_u32 v13, v3, 6, v2\nv_add_u32 v13, s54, v13")
    n = after_loads()
    traddr()
    a("s_mov_b32 s57, 0x05040100\ns_mov_b32 s58, 0x07060302\ns_mov_b32 s59, 0xffff0000")
    a(f"s_add_u32 s55, s55, {KVT}")
    a(f"s_waitcnt vmcnt({n})")
    stamp(a, "p0 landed")
    a(f"v_readfirstlane_b32 s{STAG}, v14")
    P, KS = 60, 92
    for ch in range(8):
        sel = "s58" if ch & 1 else "s57"
        for j in range(4):
            a(f"v_perm_b32 v{P+4*ch+j}, v{KR+4*j+ch//2}, v{KR+4*(j+1)+ch//2}, {sel}")
    a(f"s_mul_i32 s{STAG}, s{STAG}, 0x9E3779B1\ns_add_u32 s{STAG}, s{STAG}, 0x7F4A7C15")
    for ch in range(8):
        a(f"v_dot2_f32_bf16 v{KS+ch}, v{P+4*ch+0}, v{TP+2*ch+1}, 0")
        a(f"v_dot2_f32_bf16 v{KS+8+ch}, v{P+4*ch+1}, v{TP+2*ch+1}, 0")
    for ch in range(8):
        a(f"v_dot2_f32_bf16 v{KS+ch}, v{P+4*ch+2}, v{TP+2*ch}, v{KS+ch}")
        a(f"v_dot2_f32_bf16 v{KS+8+ch}, v{P+4*ch+3}, v{TP+2*ch}, v{KS+8+ch}")
    U = 16
    for t in range(2):
        for ch in range(8):
            src = VR+4*t+ch//2
            if ch & 1: a(f"v_and_b32 v{U+8*t+ch}, s59, v{src}")
            else:      a(f"v_lshlrev_b32 v{U+8*t+ch}, 16, v{src}")
    for i in range(16):
        a(f"v_mul_f32 v{KS+i}, v{KS+i}, v{U+i}")
    for i in range(8):
        a(f"v_cvt_pk_bf16_f32 v{P+i}, v{KS+2*i}, v{KS+2*i+1}")
    a(f"ds_write_b128 v13, {v(P,4)}\nds_write_b128 v13, {v(P+4,4)} offset:32")
    a(f"s_waitcnt lgkmcnt(0)")
    trstore()
    a(f"s_branch {ltr}")
    a(f"{lx}:")
    a("s_movk_i32 s56, 896\nv_mad_u32_u24 v8, v3, s56, v2")
    a(f"s_mov_b32 m0, s54\ns_add_u32 s57, s53, {32*896}")
    a(f"buffer_load_dwordx4 v8, {srd(R_X)}, s53 offen lds")
    a("s_add_u32 m0, s54, 1024\ns_nop 0")
    a(f"buffer_load_dwordx4 v8, {srd(R_X)}, s57 offen lds")
    a(f"s_add_u32 s55, s55, {XT}")
    a("v_lshrrev_b32 v9, 4, v0\ns_lshl_b32 s57, s51, 2\nv_add_u32 v9, s57, v9\nv_mul_u32_u24 v9, 7, v9\nv_add_u32 v9, s49, v9")
    a("v_min_u32 v10, 63, v9\ns_lshl_b32 s57, s50, 6\nv_add_u32 v10, s57, v10")
    a("v_and_b32 v11, 15, v0\nv_lshlrev_b32 v12, 4, v11\nv_mad_u32_u24 v12, v10, s56, v12")
    XR, XU = 16, 32
    for i in range(4): a(f"v_mov_b32 v{XR+12+i}, 0")
    for i in range(3):
        a(f"buffer_load_dwordx4 {v(XR+4*i,4)}, v12, {srd(R_X)}, 0 offen offset:{256*i}")
    a("s_mov_b32 s60, 0x00ff00ff\ns_mov_b32 s61, 0x00ff00ff\ns_mov_b64 exec, s[60:61]")
    a(f"buffer_load_dwordx4 {v(XR+12,4)}, v12, {srd(R_X)}, 0 offen offset:768")
    a("s_mov_b64 exec, -1")
    n = after_loads()
    traddr()
    a(f"s_mov_b32 s59, 0xffff0000\ns_waitcnt vmcnt({n})")
    if STAMPS: STAMP_NAMES.pop()
    stamp(a, "p0 landed")
    trstore()
    for i in range(16):
        a(f"v_lshlrev_b32 v{XU+2*i}, 16, v{XR+i}\nv_and_b32 v{XU+2*i+1}, s59, v{XR+i}")
    a(f"v_add_f32 v14, v{XU}, v{XU+1}\nv_add_f32 v15, v{XU+2}, v{XU+3}")
    for i in range(4, 32, 2):
        a(f"v_add_f32 v14, v14, v{XU+i}\nv_add_f32 v15, v15, v{XU+i+1}")
    a("v_add_f32 v14, v14, v15")
    def rowred(r):
        for sh in (8, 4, 2, 1):
            a(f"s_nop 1\nv_add_f32_dpp v{r}, v{r}, v{r} row_ror:{sh} row_mask:0xf bank_mask:0xf")
    rowred(14)
    a(f"v_mul_f32 v14, {f32(1.0/D)}, v14")
    for i in range(32): a(f"v_sub_f32 v{XU+i}, v{XU+i}, v14")
    a(f"v_mul_f32 v15, v{XU}, v{XU}\nv_mul_f32 v13, v{XU+1}, v{XU+1}")
    for i in range(2, 24, 2):
        a(f"v_fmac_f32 v15, v{XU+i}, v{XU+i}\nv_fmac_f32 v13, v{XU+i+1}, v{XU+i+1}")
    a("s_mov_b64 exec, s[60:61]")
    for i in range(24, 32, 2):
        a(f"v_fmac_f32 v15, v{XU+i}, v{XU+i}\nv_fmac_f32 v13, v{XU+i+1}, v{XU+i+1}")
    a("s_mov_b64 exec, -1\nv_add_f32 v15, v15, v13")
    rowred(15)
    a(f"v_mul_f32 v15, {f32(1.0/D)}, v15")
    ln_finish(a, 14, 15)
    a("v_mov_b32 v16, v15\nv_mul_f32 v17, v14, v15\nv_sub_f32 v17, 0, v17")
    a("v_lshlrev_b32 v10, 3, v10")
    lsk = a.label("p0sk")
    a("v_cmp_gt_u32 vcc, 64, v9\nv_cmp_eq_u32 s[60:61], 0, v11\ns_and_b64 vcc, vcc, s[60:61]")
    a(f"s_mov_b32 s57, {ST1}\ns_and_saveexec_b64 s[60:61], vcc\ns_cbranch_execz {lsk}")
    a(f"buffer_store_dwordx2 v[16:17], v10, {srd(R_WS)}, s57 offen {ST}")
    a(f"{lsk}:\ns_mov_b64 exec, -1")
    a(f"{ltr}:")

KVB, KFB, CAR, OUTB = L_P1, L_P1+9216, L_P1+9216+8320, L_P1+9216+8320+1280
def p1_early(a):
    a(f"s_lshr_b32 s44, s{SW}, 2\ns_and_b32 s45, s{SW}, 3")
    a("s_lshl_b32 s62, s2, 1\ns_add_u32 s62, s62, s44\ns_lshl_b32 s62, s62, 12\ns_lshl_b32 s63, s45, 10\ns_add_u32 s62, s62, s63")
    a(f"s_mul_i32 s46, s44, 4160\ns_add_u32 s46, s46, s63\ns_add_u32 m0, s46, {KFB+64}")
    a("v_lshlrev_b32 v116, 4, v0")
    a(f"buffer_load_dwordx4 v116, {srd(R_KF)}, s62 offen lds")
    lz = a.label("p1z")
    a(f"s_cmp_lg_u32 s45, 0\ns_cbranch_scc1 {lz}")
    a(f"v_mov_b32 v118, 0\nv_mov_b32 v119, 0\ns_mul_i32 s62, s44, 4608\ns_add_u32 s62, s62, {KVB}\nv_lshlrev_b32 v116, 3, v0\nv_add_u32 v117, s62, v116\nds_write_b64 v117, v[118:119]")
    a(f"v_and_b32 v116, 63, v116\ns_add_u32 s62, s46, {KFB}\nv_add_u32 v117, s62, v116\nds_write_b64 v117, v[118:119]")
    a(f"s_mul_i32 s62, s44, 640\ns_add_u32 s62, s62, {CAR}\nv_and_b32 v116, 15, v116\nv_add_u32 v117, s62, v116\nds_write_b64 v117, v[118:119]")
    a(f"{lz}:")
    a("s_lshl_b32 s62, s2, 2\ns_load_dword s46, s[74:75], s62")
    return 1

def phase1(a, after_loads):
    XF, KFR, ACC, XV, STV = 16, 80, 96, 128, 136
    a(f"s_lshr_b32 s49, s{SW}, 2\ns_and_b32 s50, s{SW}, 3")
    a("s_lshl_b32 s51, s2, 1\ns_add_u32 s51, s51, s49")
    a("s_lshl_b32 s52, s51, 12\ns_lshl_b32 s53, s50, 10\ns_add_u32 s52, s52, s53")
    a(f"s_mul_i32 s54, s49, 4608\ns_add_u32 s54, s54, {KVB}")
    a(f"s_mul_i32 s55, s49, 4160\ns_add_u32 s55, s55, {KFB}")
    a("v_lshlrev_b32 v12, 4, v0")
    a("s_add_u32 s56, s54, s53\ns_add_u32 m0, s56, 512")
    a(f"s_add_u32 s57, s52, {KVT}")
    a(f"buffer_load_dwordx4 v12, {srd(R_WS)}, s57 offen {LD} lds")
    for i in range(8): a(f"v_mov_b32 v{XV+i}, 0")
    a("v_lshlrev_b32 v13, 1, v0\nv_lshlrev_b32 v4, 3, v0")
    a(f"s_lshl_b32 s56, s51, 12\ns_lshl_b32 s57, s50, 7\ns_add_u32 s56, s56, s57\ns_add_u32 s56, s56, {XT}")
    for i in range(8):
        a(f"buffer_load_short_d16_hi v{XV+i}, v13, {srd(R_WS)}, s56 offen offset:{512*i} {LD}")
    a(f"s_lshl_b32 s57, s50, 9\ns_add_u32 s57, s57, {ST1}")
    for i in range(8):
        if i == 2 or i == 4 or i == 6: a("s_add_u32 s57, s57, 4096")
        a(f"buffer_load_dwordx2 {v(STV+2*i,2)}, v4, {srd(R_WS)}, s57 offen offset:{2048*(i&1)} {LD}")
    n = after_loads()
    a("v_lshrrev_b32 v5, 4, v0\nv_bfe_u32 v6, v0, 2, 2\nv_and_b32 v7, 3, v0")
    a("v_lshl_add_u32 v5, v5, 3, v6")
    a("v_lshlrev_b32 v8, 2, v7\nv_sub_u32 v8, v8, v5\nv_lshlrev_b32 v8, 3, v8")
    a("s_lshl_b32 s56, s50, 7\ns_add_u32 s56, s56, s54\ns_add_u32 s56, s56, %d" % (512 - 256 - 8))
    a("v_add_u32 v8, s56, v8")
    a("v_add_u32 v9, v5, v7\nv_lshlrev_b32 v9, 3, v9\ns_add_u32 s56, s55, %d\nv_add_u32 v9, s56, v9" % (64-24))
    def rdx(j):
        a(f"ds_read_b64_tr_b16 {v(XF+4*j,2)}, v8 offset:{256*j+32}\nds_read_b64_tr_b16 {v(XF+4*j+2,2)}, v8 offset:{256*j}")
    def rdk(k):
        r = KFR + 4*(k & 3)
        a(f"ds_read_b64_tr_b16 {v(r,2)}, v9 offset:{256*k}\nds_read_b64_tr_b16 {v(r+2,2)}, v9 offset:{256*k+32}")
    for k in range(4): rdk(k)
    a(f"s_waitcnt vmcnt({16+n}) lgkmcnt(0)\ns_barrier")
    stamp(a, "p1 landed")
    order = [1,3,5,7,9,11,13,15,0,2,4,6,8,10,12,14]
    for j in order[:7]: rdx(j)
    issued = 7
    for k in range(16):
        if k >= 4:
            a("s_waitcnt lgkmcnt(%d)" % (2 if k < 15 else 0))
        for nu in range(8):
            j = 2*nu + 1 - k
            if j < 0: continue
            if k < 2:
                pos = order.index(j)
                a(f"s_waitcnt lgkmcnt({2*(issued-1-pos)})")
            cin = "0" if k == 0 else v(ACC+4*nu,4)
            a(f"v_mfma_f32_16x16x32_bf16 {v(ACC+4*nu,4)}, {v(XF+4*j,4)}, {v(KFR+4*(k&3),4)}, {cin}")
            if issued < 16:
                rdx(order[issued]); issued += 1
        if k >= 2 and k+2 < 16: rdk(k+2)
    stamp(a, "p1 mfma done")
    KVV, CV = XF, XF+8
    for i in range(16): a(f"v_mov_b32 v{KVV+i}, 0")
    a("s_lshl_b32 s57, s50, 7\ns_add_u32 s57, s57, s54\nv_add_u32 v11, s57, v13")
    for nu in range(8):
        a(f"ds_read_u16_d16_hi v{KVV+nu}, v11 offset:{512+512*nu}")
    dpp = "wave_shr:1 row_mask:0xf bank_mask:0xf bound_ctrl:0"
    for st in (2, 1, 0):
        for nu in range(8):
            a(f"v_add_f32_dpp v{ACC+4*nu+st}, v{ACC+4*nu+st+1}, v{ACC+4*nu+st} {dpp}")
    a(f"s_mul_i32 s56, s49, 640\ns_lshl_b32 s57, s50, 4\ns_add_u32 s56, s56, s57\ns_add_u32 s56, s56, {CAR}")
    a("v_mov_b32 v10, s56\ns_mov_b32 s60, 0\ns_mov_b32 s61, 0x80000000\ns_mov_b64 exec, s[60:61]")
    for nu in range(8):
        a(f"ds_write_b128 v10, {v(ACC+4*nu,4)} offset:{64*nu+16}")
    a("s_mov_b64 exec, -1")
    a("s_lshl_b32 s59, s46, 16\ns_and_b32 s58, s46, 0xffff0000\ns_cmp_eq_u32 s49, 0\ns_cselect_b32 s58, s59, s58")
    a(f"s_waitcnt vmcnt({n})")
    for nu in range(8):
        a(f"v_fma_f32 v{STV+2*nu}, v{XV+nu}, v{STV+2*nu}, v{STV+2*nu+1}")
    a("s_waitcnt lgkmcnt(0)\ns_barrier")
    a("v_lshl_add_u32 v10, v0, 2, v10\ns_mov_b64 exec, 7")
    for nu in range(8):
        a(f"ds_read_b32 v{CV+nu}, v10 offset:{64*nu+4}")
    a("s_mov_b64 exec, -1")
    for nu in range(8):
        a(f"v_fmac_f32 v{ACC+4*nu}, s58, v{KVV+nu}")
    a(f"s_lshl_b32 s56, s{SW}, 10\ns_add_u32 s56, s56, {OUTB}\nv_add_u32 v11, s56, v13\nv_add_u32 v12, s56, v12")
    a("v_lshrrev_b32 v5, 3, v0\ns_mov_b32 s56, %d\nv_mul_lo_u32 v5, v5, s56\nv_and_b32 v6, 7, v0\nv_lshl_add_u32 v5, v6, 4, v5" % (2*114688))
    a("s_lshr_b32 s56, s50, 1\ns_mul_i32 s56, s56, 114688\ns_lshl_b32 s57, s51, 8\ns_add_u32 s56, s56, s57")
    a(f"s_and_b32 s57, s50, 1\ns_lshl_b32 s57, s57, 7\ns_add_u32 s56, s56, s57\ns_add_u32 s56, s56, {HT}")
    a("s_waitcnt lgkmcnt(0)")
    for nu in range(8): a(f"v_add_f32 v{ACC+4*nu}, v{ACC+4*nu}, v{CV+nu}")
    for nu in range(8): a(f"v_fmac_f32 v{XV+nu}, v{STV+2*nu}, v{ACC+4*nu}")
    for nu in range(0, 8, 2): a(f"v_cvt_pk_bf16_f32 v{XV+nu}, v{XV+nu}, v{XV+nu+1}")
    for nu in range(0, 8, 2):
        a(f"ds_write_b16 v11, v{XV+nu} offset:{128*nu}\nds_write_b16_d16_hi v11, v{XV+nu} offset:{128*nu+128}")
    a("s_waitcnt lgkmcnt(0)\nds_read_b128 v[16:19], v12")
    a("s_waitcnt lgkmcnt(0)")
    a(f"buffer_store_dwordx4 v[16:19], v5, {srd(R_WS)}, s56 offen {ST}")

def map23(a):
    a("s_and_b32 s94, s2, 7\ns_lshr_b32 s95, s2, 3")
    a("s_and_b32 s90, s95, 3\ns_and_b32 s93, s94, 3\ns_lshl_b32 s93, s93, 2\ns_add_u32 s90, s90, s93")
    a("s_lshr_b32 s93, s95, 2\ns_lshr_b32 s94, s94, 2\ns_mul_i32 s91, s94, 7\ns_add_u32 s91, s91, s93")
    a("s_lshl_b32 s92, s90, 1\ns_add_u32 s92, s92, s94")

W1R, ACC2, BF, CS = 144, 80, 48, 32
def w1_issue(a, batch):
    t = 152
    a(f"v_lshrrev_b32 v{t+2}, 4, v0\nv_and_b32 v{t+3}, 15, v0\nv_lshlrev_b32 v{t+4}, 2, v{t+2}\nv_xor_b32 v{t+3}, v{t+3}, v{t+4}")
    a(f"s_movk_i32 s62, 3584\nv_lshlrev_b32 v{t+4}, 4, v{t+3}\nv_mad_u32_u24 v{t}, v{t+2}, s62, v{t+4}\nv_xor_b32 v{t+1}, 32, v{t}")
    a(f"s_mul_i32 s62, s{SW}, {4*3584}\ns_lshl_b32 s63, s91, 8\ns_add_u32 s62, s62, s63\ns_add_u32 s62, s62, {batch*7*32*3584}")
    a(f"s_lshl_b32 s63, s{SW}, 10")
    for sl in range(7):
        a(f"s_add_u32 m0, s63, {sl*16384}\ns_add_u32 s94, s62, {sl*32*3584}")
        a(f"buffer_load_dwordx4 v{t}, {srd(R_WG)}, s94 offen lds")
        a(f"s_add_u32 m0, s63, {sl*16384+8192}\ns_nop 0")
        a(f"buffer_load_dwordx4 v{t+1}, {srd(R_WU)}, s94 offen lds")
    return 14
def w1_read(a, batch):
    a("v_bfe_u32 v4, v0, 4, 1\nv_lshrrev_b32 v5, 5, v0\nv_bfe_u32 v6, v0, 2, 2\nv_and_b32 v7, 3, v0")
    a("v_lshl_add_u32 v8, v6, 1, v4")
    a(f"v_xor_b32 v8, s{SW}, v8\nv_lshlrev_b32 v8, 5, v8\nv_lshl_add_u32 v8, v7, 3, v8")
    a("v_lshl_add_u32 v5, v5, 3, v6\nv_lshl_add_u32 v8, v5, 8, v8\nv_lshl_add_u32 v8, v4, 13, v8")
    a(f"s_lshr_b32 s56, s{SW}, 2\ns_lshl_b32 s56, s56, 10\nv_add_u32 v8, s56, v8\nv_xor_b32 v9, 1024, v8")
    a("v_add_u32 v10, 0x10000, v8\nv_add_u32 v11, 0x10000, v9")
    for kl in range(14):
        off = (kl >> 1)*16384 + (kl & 1)*4096
        ra, rb = (8, 9) if off < 65536 else (10, 11)
        off &= 0xffff
        r = W1R + 4*(14*batch + kl)
        a(f"ds_read_b64_tr_b16 {v(r,2)}, v{ra} offset:{off}\nds_read_b64_tr_b16 {v(r+2,2)}, v{rb} offset:{off}")
    a("s_waitcnt lgkmcnt(0)")
def colsum(a):
    for i in range(4): a(f"v_mov_b32 v{BF+i}, 0x3f803f80")
    a("s_nop 1")
    for k in range(28):
        cin = "0" if k == 0 else v(CS,16)
        a(f"v_mfma_f32_32x32x16_bf16 {v(CS,16)}, {v(W1R+4*k,4)}, {v(BF,4)}, {cin}")

WREG = 18432
HB = 8*WREG
def wd_setup(a):
    a("v_lshrrev_b32 v4, 3, v0\nv_bfe_u32 v5, v0, 4, 1\nv_lshlrev_b32 v5, 2, v5\nv_and_b32 v6, 7, v0\nv_xor_b32 v5, v5, v6")
    a("s_movk_i32 s56, 896\nv_lshlrev_b32 v5, 4, v5\nv_mad_u32_u24 v14, v4, s56, v5")
    a(f"s_mul_i32 s62, s{SW}, {224*896}\ns_lshl_b32 s63, s93, 7\ns_add_u32 s62, s62, s63\ns_mul_i32 s63, s{SW}, {WREG}")
    a("v_lshlrev_b32 v5, 4, v6\nv_lshl_add_u32 v7, v4, 8, v5")
    a(f"s_mul_i32 s61, s90, 114688\ns_and_b32 s56, s92, 1\ns_lshl_b32 s56, s56, 7\ns_add_u32 s61, s61, s56")
    a(f"s_lshl_b32 s56, s93, 14\ns_add_u32 s61, s61, s56\ns_lshl_b32 s56, s{SW}, 11\ns_add_u32 s61, s61, s56\ns_add_u32 s61, s61, {HT}")
    a(f"s_lshl_b32 s56, s{SW}, 10\ns_add_u32 m0, s56, {HB}\ns_nop 0")
    a(f"buffer_load_dwordx4 v7, {srd(R_WS)}, s61 offen {LD} lds")
def wd(a, k):
    sl = k % 9
    for hf in range(2):
        a(f"s_add_u32 m0, s63, {sl*2048+hf*1024}\ns_add_u32 s94, s62, {(16*k+8*hf)*896}")
        a(f"buffer_load_dwordx4 v14, {srd(R_WD)}, s94 offen lds")

def phase2(a):
    STB = L_STB
    a("v_lshrrev_b32 v4, 4, v0\nv_lshlrev_b32 v5, 2, v4\nv_xor_b32 v5, v5, v0\nv_lshlrev_b32 v2, 4, v5")
    a(f"s_mul_i32 s57, s90, 114688\ns_lshl_b32 s58, s{SW}, 10\ns_add_u32 s57, s57, s58\ns_add_u32 s57, s57, {HT}")
    for j in range(14):
        a(f"s_add_u32 m0, s58, {j*8192}\ns_add_u32 s59, s57, {j*8192}")
        a(f"buffer_load_dwordx4 v2, {srd(R_WS)}, s59 offen {LD} lds")
    a("v_bfe_u32 v4, v0, 4, 1\nv_lshrrev_b32 v5, 5, v0\nv_bfe_u32 v6, v0, 2, 2\nv_and_b32 v7, 3, v0")
    a(f"s_and_b32 s56, s{SW}, 3\nv_xor_b32 v8, s56, v6\nv_lshlrev_b32 v8, 6, v8")
    a("v_lshl_add_u32 v8, v4, 5, v8\nv_lshl_add_u32 v8, v7, 3, v8\nv_lshl_add_u32 v5, v5, 3, v6\nv_lshl_add_u32 v8, v5, 8, v8")
    a(f"s_lshr_b32 s56, s{SW}, 2\ns_lshl_b32 s56, s56, 10\nv_add_u32 v16, s56, v8")
    for t in range(1, 4): a(f"v_xor_b32 v{16+t}, {64*t}, v16")
    for t in range(4): a(f"v_xor_b32 v{20+t}, 1024, v{16+t}")
    a("v_mov_b32 v24, 0\nv_mov_b32 v25, 0\nv_mov_b32 v26, 0\nv_mov_b32 v27, 0\ns_mov_b32 s59, 0xffff0000")
    def rd(k):
        off = (k & 15)*4096
        b = BF + 16*(k & 1)
        for t in range(4):
            a(f"ds_read_b64_tr_b16 {v(b+4*t,2)}, v{16+t} offset:{off}\nds_read_b64_tr_b16 {v(b+4*t+2,2)}, v{20+t} offset:{off}")
    a("s_waitcnt vmcnt(13)\ns_barrier")
    stamp(a, "p2 h0 landed")
    rd(0)
    for k in range(28):
        if k == 1: a("s_waitcnt vmcnt(10)\ns_barrier")
        if k == 7: a("s_waitcnt vmcnt(0)\ns_barrier")
        if k == 15:
            for t in range(8): a(f"v_add_u32 v{16+t}, 0x10000, v{16+t}")
        if k < 27:
            rd(k+1)
            a("s_waitcnt lgkmcnt(8)")
        else:
            a("s_waitcnt lgkmcnt(0)")
        b = BF + 16*(k & 1)
        st = [f"v_lshlrev_b32 v28, 16, v{b}", f"v_and_b32 v29, s59, v{b}", f"v_lshlrev_b32 v30, 16, v{b+1}", f"v_and_b32 v31, s59, v{b+1}",
              "v_add_f32 v24, v24, v28", "v_add_f32 v25, v25, v29", "v_fmac_f32 v26, v28, v28", "v_fmac_f32 v27, v29, v29",
              "v_add_f32 v24, v24, v30", "v_add_f32 v25, v25, v31", "v_fmac_f32 v26, v30, v30", "v_fmac_f32 v27, v31, v31"]
        for t in range(4):
            cin = "0" if k == 0 else v(ACC2+16*t,16)
            a(f"v_mfma_f32_32x32x16_bf16 {v(ACC2+16*t,16)}, {v(W1R+4*k,4)}, {v(b+4*t,4)}, {cin}")
            for x in st[3*t:3*t+3]: a(x)
    stamp(a, "p2 mainloop done")
    a("v_add_f32 v24, v24, v25\nv_add_f32 v25, v26, v27")
    a(f"s_and_b32 s56, s{SW}, 3\ns_lshl_b32 s56, s56, 10\ns_lshr_b32 s57, s{SW}, 2\ns_lshl_b32 s57, s57, 4\ns_add_u32 s57, s57, s56\ns_add_u32 s57, s57, {STB}")
    a("v_and_b32 v12, 31, v0\nv_lshlrev_b32 v12, 5, v12\nv_lshrrev_b32 v5, 5, v0\nv_lshl_add_u32 v5, v5, 3, v12\nv_add_u32 v5, s57, v5")
    a("ds_write_b64 v5, v[24:25]")
    a(f"s_add_u32 s56, s56, {STB}\nv_add_u32 v12, s56, v12")
    a("s_waitcnt lgkmcnt(0)\ns_barrier")
    for t in range(4):
        a(f"v_xor_b32 v5, {1024*t}, v12\nds_read_b128 {v(BF+8*t,4)}, v5\nds_read_b128 {v(BF+8*t+4,4)}, v5 offset:16")
    wd_setup(a)
    for k in range(9): wd(a, k)
    a("s_waitcnt lgkmcnt(0)")
    MV, RV = 16, 20
    for t in range(4):
        b = BF+8*t
        a(f"v_add_f32 v{b}, v{b}, v{b+2}\nv_add_f32 v{b+4}, v{b+4}, v{b+6}\nv_add_f32 v{b+1}, v{b+1}, v{b+3}\nv_add_f32 v{b+5}, v{b+5}, v{b+7}")
        a(f"v_add_f32 v{b}, v{b}, v{b+4}\nv_add_f32 v{b+1}, v{b+1}, v{b+5}")
        a(f"v_mul_f32 v{MV+t}, {f32(1.0/D)}, v{b}\nv_mul_f32 v{RV+t}, {f32(1.0/D)}, v{b+1}")
        a(f"v_fma_f32 v{RV+t}, -v{MV+t}, v{MV+t}, v{RV+t}\nv_max_f32 v{RV+t}, 0, v{RV+t}")
        ln_finish(a, MV+t, RV+t)
    stamp(a, "p2 stats done")
    c0 = -2.0*math.sqrt(2.0/math.pi)*math.log2(math.e)
    a(f"s_mov_b32 s60, {f32(c0*0.044715)}\nv_mov_b32 v24, {f32(c0)}")
    a(f"v_lshlrev_b32 v2, 4, v0\ns_lshl_b32 s56, s91, 3\ns_add_u32 s56, s56, s{SW}\ns_lshl_b32 s56, s56, 10\ns_add_u32 s56, s56, {GG}")
    a(f"s_and_b32 s57, s{SW}, 3\ns_lshl_b32 s58, s90, 2")
    T0 = BF
    for t in range(4):
        A = ACC2+16*t
        for i in range(16): a(f"v_fma_f32 v{A+i}, -v{MV+t}, v{CS+i}, v{A+i}")
        for i in range(16): a(f"v_mul_f32 v{A+i}, v{A+i}, v{RV+t}")
        for i in range(8): a(f"v_mul_f32 v{T0+i}, v{A+i}, v{A+i}")
        for i in range(8): a(f"v_fma_f32 v{T0+i}, v{T0+i}, s60, v24")
        for i in range(8): a(f"v_mul_f32 v{T0+i}, v{T0+i}, v{A+i}")
        for i in range(8): a(f"v_exp_f32 v{T0+i}, v{T0+i}")
        for i in range(8): a(f"v_mul_f32 v{A+i}, v{A+i}, v{A+8+i}")
        for i in range(8): a(f"v_add_f32 v{T0+i}, 1.0, v{T0+i}")
        for i in range(8): a(f"v_rcp_f32 v{T0+i}, v{T0+i}")
        a(f"s_xor_b32 s59, s57, {t}\ns_add_u32 s59, s59, s58\ns_mul_i32 s59, s59, {112*1024}\ns_add_u32 s59, s59, s56")
        for i in range(8): a(f"v_mul_f32 v{A+i}, v{A+i}, v{T0+i}")
        for i in range(4): a(f"v_cvt_pk_bf16_f32 v{A+8+i}, v{A+2*i}, v{A+2*i+1}")
        a(f"buffer_store_dwordx4 {v(A+8,4)}, v2, {srd(R_WS)}, s59 offen {ST}")

ACC3, AF, GF, AR = 16, 80, 96, 208
def p3_pre(a):
    a("v_bfe_u32 v4, v0, 4, 1\nv_lshrrev_b32 v5, 5, v0\nv_bfe_u32 v6, v0, 2, 2\nv_and_b32 v7, 3, v0")
    a("v_lshl_add_u32 v5, v5, 2, v6\nv_lshlrev_b32 v12, 7, v5\nv_lshrrev_b32 v6, 1, v6\nv_lshl_add_u32 v12, v6, 6, v12")
    a("v_lshl_add_u32 v12, v4, 5, v12\nv_lshl_add_u32 v12, v7, 3, v12\nv_add_u32 v12, s63, v12\nv_xor_b32 v13, 64, v12")
    for k in range(5):
        for mt in range(2):
            b = AR + 8*k + 4*mt
            a(f"ds_read_b64_tr_b16 {v(b,2)}, v{12+mt} offset:{k*2048}\nds_read_b64_tr_b16 {v(b+2,2)}, v{12+mt} offset:{k*2048+1024}")
    a("s_waitcnt lgkmcnt(0)")
    for k in range(9, 14): wd(a, k)
def phase3(a):
    a(f"v_lshlrev_b32 v3, 4, v0\ns_mul_i32 s60, s92, {2*112*1024}\ns_mul_i32 s61, s{SW}, {14*1024}\ns_add_u32 s60, s60, s61\ns_add_u32 s60, s60, {GG}")
    a(f"s_add_u32 s61, s60, {112*1024}")
    for k in range(14):
        if k % 4 == 0 and k: a("s_add_u32 s60, s60, 4096\ns_add_u32 s61, s61, 4096")
        for nt in range(2):
            a(f"buffer_load_dwordx4 {v(GF+8*k+4*nt,4)}, v3, {srd(R_WS)}, s{60+nt} offen offset:{(k%4)*1024} {LD}")
    def rda(k):
        b = AF + 8*(k & 1); off = (k % 9)*2048
        for mt in range(2):
            a(f"ds_read_b64_tr_b16 {v(b+4*mt,2)}, v{12+mt} offset:{off}\nds_read_b64_tr_b16 {v(b+4*mt+2,2)}, v{12+mt} offset:{off+1024}")
    for k in range(14):
        a(f"s_waitcnt vmcnt({2*(13-k)})")
        if 5 <= k+1 < 14: rda(k+1)
        if k >= 5: a("s_waitcnt lgkmcnt(%d)" % (4 if k < 13 else 0))
        b = AR + 8*k if k < 5 else AF + 8*(k & 1)
        for nt in range(2):
            for mt in range(2):
                A = ACC3 + 16*(2*nt+mt)
                cin = "0" if k == 0 else v(A,16)
                a(f"v_mfma_f32_32x32x16_bf16 {v(A,16)}, {v(b+4*mt,4)}, {v(GF+8*k+4*nt,4)}, {cin}")
    stamp(a, "p3 mainloop done")
    a("v_add_u32 v4, s63, v3\ns_nop 7\ns_nop 3")
    for i in range(16):
        a(f"ds_write_b128 v4, {v(ACC3+4*i,4)} offset:{1088*i}")
    a("v_lshrrev_b32 v4, 5, v0\nv_and_b32 v5, 3, v0\nv_lshl_add_u32 v4, v4, 2, v5\nv_bfe_u32 v6, v0, 2, 3")
    a(f"s_and_b32 s56, s{SW}, 3\ns_lshl_b32 s56, s56, 7\ns_lshr_b32 s57, s{SW}, 2\ns_mul_i32 s57, s57, {8*1088}\ns_add_u32 s56, s56, s57")
    a("s_movk_i32 s57, 1088\nv_lshlrev_b32 v7, 4, v4\nv_mad_u32_u24 v7, v6, s57, v7\nv_add_u32 v7, s56, v7")
    a(f"v_add_u32 v8, {3*WREG}, v7\nv_add_u32 v9, {6*WREG}, v7")
    a("v_bfe_u32 v10, v0, 4, 1\nv_lshl_add_u32 v10, v10, 2, v5\nv_bfe_u32 v11, v0, 2, 2\nv_lshl_add_u32 v10, v10, 3, v11\nv_lshlrev_b32 v10, 7, v10")
    a(f"v_lshrrev_b32 v11, 5, v0\nv_lshl_add_u32 v10, v11, 3, v10\ns_lshl_b32 s56, s{SW}, 4\ns_add_u32 s56, s56, {HB}\nv_add_u32 v10, s56, v10")
    a("s_movk_i32 s57, 896\nv_lshlrev_b32 v6, 4, v6\nv_mad_u32_u24 v4, v4, s57, v6")
    a(f"s_lshl_b32 s56, s92, 3\ns_add_u32 s56, s56, s{SW}\ns_mul_i32 s56, s56, {8*896}\ns_lshl_b32 s57, s93, 7\ns_add_u32 s56, s56, s57")
    a("s_mov_b32 s59, 0xffff0000")
    a("s_waitcnt lgkmcnt(0)\ns_barrier")
    stamp(a, "p3 red written")
    PR = 96
    a("ds_read_b64_tr_b16 v[12:13], v10\nds_read_b64_tr_b16 v[14:15], v10 offset:512")
    for p in range(8):
        for hh in range(2):
            a(f"ds_read_b128 {v(PR+8*p+4*hh,4)}, v{7+p//3} offset:{(p%3)*WREG+512*hh}")
    a("s_waitcnt lgkmcnt(12)")
    for i in range(4):
        a(f"v_lshlrev_b32 v{16+2*i}, 16, v{12+i}\nv_and_b32 v{17+2*i}, s59, v{12+i}")
    for p in range(1, 8):
        a(f"s_waitcnt lgkmcnt({2*(7-p)})")
        for i in range(8): a(f"v_add_f32 v{PR+i}, v{PR+i}, v{PR+8*p+i}")
    for i in range(4):
        a(f"v_cvt_pk_bf16_f32 v{24+i}, v{PR+2*i}, v{PR+2*i+1}")
    for i in range(4):
        a(f"v_lshlrev_b32 v{PR+2*i}, 16, v{24+i}\nv_and_b32 v{PR+2*i+1}, s59, v{24+i}")
    for i in range(8): a(f"v_add_f32 v{PR+i}, v{PR+i}, v{16+i}")
    for i in range(4): a(f"v_cvt_pk_bf16_f32 v{24+i}, v{PR+2*i}, v{PR+2*i+1}")
    a(f"buffer_store_dwordx4 v[24:27], v4, {srd(R_OUT)}, s56 offen")

def main(out):
    a = Asm()
    kn = NAME + "_kernel"
    hdr = open("cdna_kernels/%s.s.ref" % NAME).read().split("; Override launch geometry")[0]
    hdr += f"; @launch grid=({NWG},1,1) block=(512,1,1) lds=163840\n"
    a('.amdgcn_target "amdgcn-amd-amdhsa--gfx950"\n.text')
    prologue(a, kn)
    early = OPT["w1a"] == "early"
    phase0(a, lambda: p1_early(a) + (w1_issue(a, 1) if early else 0))
    stamp(a, "p0 issued")
    a("s_waitcnt vmcnt(0) lgkmcnt(0)\ns_barrier")
    stamp(a, "p0 drained")
    signal(a, 0)
    if early:
        w1_read(a, 1)
        wait(a, 0)
    else:
        w1_issue(a, 1)
        wait(a, 0)
    stamp(a, "sync1 done")
    if early:
        phase1(a, lambda: w1_issue(a, 0))
    else:
        raise NotImplementedError
    stamp(a, "p1 issued")
    a("s_waitcnt vmcnt(0)\ns_barrier")
    stamp(a, "p1 drained")
    signal(a, 1)
    w1_read(a, 0)
    colsum(a)
    stamp(a, "colsum issued")
    wait(a, 1)
    stamp(a, "sync2 done")
    phase2(a)
    stamp(a, "p2 issued")
    a("s_waitcnt vmcnt(0)\ns_barrier")
    stamp(a, "p2 drained")
    signal(a, 2)
    p3_pre(a)
    wait(a, 2)
    stamp(a, "sync3 done")
    phase3(a)
    stamp(a, "p3 issued")
    if STAMPS: a("s_waitcnt vmcnt(0)")
    stamp(a, "end"); stamp_flush(a, 0)
    a("L_end:\ns_endpgm")
    a('.section .rodata,"a"')
    a(f""".p2align 6
.amdhsa_kernel {kn}
  .amdhsa_next_free_vgpr 256
  .amdhsa_next_free_sgpr 102
  .amdhsa_accum_offset 256
  .amdhsa_group_segment_fixed_size 0
  .amdhsa_kernarg_size 104
  .amdhsa_user_sgpr_count 2
  .amdhsa_user_sgpr_kernarg_segment_ptr 1
  .amdhsa_system_sgpr_workgroup_id_x 1
.end_amdhsa_kernel""")
    open(out, "w").write(hdr + a.text())
    if STAMPS: open(out + ".stamps", "w").write("\n".join(STAMP_NAMES))

if __name__ == "__main__":
    if "--stamps" in sys.argv: STAMPS = True
    main(sys.argv[1])
```
